```python
import torch

def _softmax(x, axis=-1):
    return torch.softmax(x, dim=axis)
def _gelu(x):
    return torch.nn.functional.gelu(x, approximate="tanh")
def _silu(x):
    return torch.nn.functional.silu(x)
def _sigmoid(x):
    return torch.sigmoid(x)
def _layernorm(x, axis=-1, eps=1e-5):
    m = x.mean(dim=axis, keepdim=True)
    v = x.var(dim=axis, keepdim=True, unbiased=False)
    return (x - m) / torch.sqrt(v + eps)
def _scatter_add(tgt, idx, src, axis=0):
    return tgt.clone().index_add_(axis, idx, src)
def _segment_sum(src, seg, n):
    out = torch.zeros((n,) + src.shape[1:], dtype=src.dtype)
    return out.index_add_(0, seg, src)
def _pad(x, pw):
    flat = tuple(v for pair in reversed(pw) for v in pair)
    return torch.nn.functional.pad(x, flat)

kernel_name = 'sequential_preLN__linear_kernel_hedgehog__glu_gated_geglu__prompt'

def setup_inputs():

    _w = (lambda a: (lambda t: t.to(torch.bfloat16) if t.is_floating_point() else t)(torch.as_tensor(a)))
    def _A_setup():
        B, S, D, H = 1, 2048, 640, 32
        Dh = D // H
        return {
            "x": _w((lambda *s: torch.randn(*s, dtype=torch.bfloat16) * 0.05)(B, S, D)),
            "wqkv": _w((lambda *s: torch.randn(*s, dtype=torch.bfloat16) * 0.2)(D, 3 * D)),
            "w_phi": _w((lambda *s: torch.randn(*s, dtype=torch.bfloat16) * 0.2)(H, Dh, Dh) * (Dh ** -0.5)),
            "wo": _w((lambda *s: torch.randn(*s, dtype=torch.bfloat16) * 0.05)(D, D)),
        }
    _A_in = _A_setup()

    def _B_setup():
        B, S, Dm, Df = 1, 2048, 640, 1536
        return {
            "x": _w((lambda *s: torch.randn(*s, dtype=torch.bfloat16) * 0.05)(B, S, Dm)),
            "w_gate": _w((lambda *s: torch.randn(*s, dtype=torch.bfloat16) * 0.4)(Dm, Df) * (Dm ** -0.5)),
            "w_up": _w((lambda *s: torch.randn(*s, dtype=torch.bfloat16) * 0.4)(Dm, Df) * (Dm ** -0.5)),
            "w_down": _w((lambda *s: torch.randn(*s, dtype=torch.bfloat16) * 0.4)(Df, Dm) * (Df ** -0.5)),
        }
    _B_in = _B_setup()

    return {
        "A_x": _A_in["x"],
        "A_wqkv": _A_in["wqkv"],
        "A_w_phi": _A_in["w_phi"],
        "A_wo": _A_in["wo"],
        "B_x": _B_in["x"],
        "B_w_gate": _B_in["w_gate"],
        "B_w_up": _B_in["w_up"],
        "B_w_down": _B_in["w_down"],
    }

def reference(A_x, A_wqkv, A_w_phi, A_wo, B_x, B_w_gate, B_w_up, B_w_down):
    def _A_ref(x, wqkv, w_phi, wo):
        B, S, D = x.shape
        H = 32; Dh = D // H
        qkv = (lambda x, *d: x.permute(*d))((x @ wqkv).reshape(B, S, 3, H, Dh), 2, 0, 3, 1, 4)
        q, k, v = qkv[0], qkv[1], qkv[2]
        pq = torch.einsum("bhsd,hdf->bhsf", q, w_phi)
        pk = torch.einsum("bhsd,hdf->bhsf", k, w_phi)
        phi_q = torch.concatenate([_softmax(pq, axis=-1), _softmax(-pq, axis=-1)], axis=-1)
        phi_k = torch.concatenate([_softmax(pk, axis=-1), _softmax(-pk, axis=-1)], axis=-1)
        kv = torch.einsum("bhsf,bhsd->bhfd", phi_k, v)
        z  = torch.einsum("bhsf->bhf", phi_k)
        num = torch.einsum("bhqf,bhfd->bhqd", phi_q, kv)
        den = torch.einsum("bhqf,bhf->bhq", phi_q, z)[..., None] + 1e-6
        o = num / den
        return (lambda x, *d: x.permute(*d))(o, 0, 2, 1, 3).reshape(B, S, D) @ wo

    def _B_ref(x, w_gate, w_up, w_down):
        g = torch.einsum("bsd,df->bsf", x, w_gate)
        u = torch.einsum("bsd,df->bsf", x, w_up)
        h = _gelu(g) * u
        return torch.einsum("bsf,fd->bsd", h, w_down)

    x = A_x
    h = x + _A_ref(_layernorm(x, axis=-1), A_wqkv, A_w_phi, A_wo)
    h2 = h + _B_ref(_layernorm(h, axis=-1), B_w_gate, B_w_up, B_w_down)
    return h2
```

```python
import re

REG_RE = re.compile(r'^(-?)(abs\()?([vas])(\d+)\)?$')
RNG_RE = re.compile(r'^(-?)(abs\()?([vas])\[(\d+):(\d+)\]\)?$')


def regs_of(tok):
    tok = tok.strip()
    if tok in ('vcc', 'exec', 'm0', 'scc'):
        return [tok]
    if tok in ('vcc_lo', 'vcc_hi'):
        return ['vcc']
    if tok in ('exec_lo', 'exec_hi'):
        return ['exec']
    m = REG_RE.match(tok)
    if m:
        return [(m.group(3), int(m.group(4)))]
    m = RNG_RE.match(tok)
    if m:
        return [(m.group(3), i) for i in range(int(m.group(4)), int(m.group(5)) + 1)]
    return []


def split_operands(s):
    out, depth, cur = [], 0, ''
    for ch in s:
        if ch in '[(':
            depth += 1
        elif ch in '])':
            depth -= 1
        if ch == ',' and depth == 0:
            out.append(cur.strip())
            cur = ''
        else:
            cur += ch
    if cur.strip():
        out.append(cur.strip())
    return out


TRANS = ('v_exp_f32', 'v_log_f32', 'v_rcp_f32', 'v_rsq_f32', 'v_sqrt_f32', 'v_sin_f32', 'v_cos_f32')
NO_DST_S = ('s_cmp', 's_waitcnt', 's_barrier', 's_branch', 's_cbranch', 's_nop', 's_setprio', 's_sleep',
            's_endpgm', 's_bitcmp')


class Inst:
    def __init__(self, text, tag=None, kind=None):
        self.text = text.strip()
        self.tag = tag
        self.pre_wait_vm = None
        self.pre_wait_lgkm = None
        self.pre_nop = 0
        self.defs = set()
        self.uses = set()
        self.srcc = set()
        self.srcab = set()
        self.data = set()
        self.kind = kind
        self.op = ''
        if kind in ('label', 'comment', 'waittag', 'flush', 'raw', 'need'):
            return
        self._parse()

    def _parse(self):
        t = self.text
        parts = t.split(None, 1)
        op = parts[0]
        self.op = op
        rest = parts[1] if len(parts) > 1 else ''
        ops = split_operands(rest)
        mods = ''
        if ops:
            last = ops[-1].split(None, 1)
            ops[-1] = last[0]
            if len(last) > 1:
                mods = last[1]
        self.mods = mods
        R = [regs_of(o) for o in ops]
        base = op.replace('_e32', '').replace('_e64', '').replace('_dpp', '')
        self.base = base
        is_dpp = op.endswith('_dpp') or any(k in mods for k in ('row_', 'quad_perm', 'wave_'))
        self.is_dpp = is_dpp
        if base.startswith('v_mfma'):
            self.kind = 'mfma'
            self.passes = 8 if '32x32' in base else 4
            self.defs = set(R[0])
            self.srcab = set(R[1]) | set(R[2])
            self.srcc = set(R[3])
            self.uses = self.srcab | self.srcc
            self.dtuple = tuple(R[0])
            self.ctuple = tuple(R[3])
        elif base.startswith('v_'):
            self.kind = 'trans' if base in TRANS else 'valu'
            if base.startswith('v_cmp'):
                self.defs = set(R[0])
                for r in R[1:]:
                    self.uses |= set(r)
                assert not base.startswith('v_cmpx')
            elif base.startswith('v_permlane') and 'swap' in base:
                self.defs = set(R[0]) | set(R[1])
                self.uses = set(R[0]) | set(R[1])
            elif base in ('v_add_co_u32', 'v_sub_co_u32', 'v_addc_co_u32', 'v_subb_co_u32'):
                self.defs = set(R[0]) | set(R[1])
                for r in R[2:]:
                    self.uses |= set(r)
            else:
                self.defs = set(R[0])
                for r in R[1:]:
                    self.uses |= set(r)
                if base in ('v_fmac_f32', 'v_dot2c_f32_bf16', 'v_writelane_b32') or is_dpp:
                    self.uses |= set(R[0])
            self.uses.add('exec')
        elif base.startswith('buffer_') or base.startswith('global_'):
            lds = ' lds' in (' ' + mods) or 'load_lds' in base
            allr = set()
            for r in R:
                allr |= set(r)
            if lds:
                self.kind = 'dma'
                self.uses = allr | {'m0'}
            elif '_load' in base:
                self.kind = 'vload'
                self.defs = set(R[0])
                for r in R[1:]:
                    self.uses |= set(r)
            elif '_atomic' in base and 'sc0' in mods:
                self.kind = 'vload'
                if base.startswith('buffer_'):
                    self.defs = set(R[0])
                    self.uses = allr
                else:
                    self.defs = set(R[0])
                    for r in R[1:]:
                        self.uses |= set(r)
            else:
                self.kind = 'vstore'
                self.uses = allr
                self.data = set(R[0]) if base.startswith('buffer_') else set(R[1])
                self.wide = ('x3' in base or 'x4' in base)
            self.uses.add('exec')
        elif base.startswith('ds_'):
            if 'read' in base or 'bpermute' in base or 'swizzle' in base or 'permute' in base:
                self.kind = 'dsread'
                self.defs = set(R[0])
                for r in R[1:]:
                    self.uses |= set(r)
            else:
                self.kind = 'dswrite'
                for r in R:
                    self.uses |= set(r)
            self.uses.add('exec')
        elif base.startswith('s_load') or base.startswith('s_buffer_load') or base in ('s_memtime', 's_memrealtime'):
            self.kind = 'smem'
            self.defs = set(R[0])
            for r in R[1:]:
                self.uses |= set(r)
        elif base == 's_waitcnt':
            self.kind = 'wait'
            m = re.search(r'vmcnt\((\d+)\)', t)
            self.vm = int(m.group(1)) if m else None
            m = re.search(r'lgkmcnt\((\d+)\)', t)
            self.lgkm = int(m.group(1)) if m else None
        elif base == 's_nop':
            self.kind = 'nop'
            self.n = int(ops[0], 0) + 1
        elif base.startswith('s_'):
            self.kind = 'salu'
            if base == 's_barrier':
                self.kind = 'barrier'
            elif base.startswith('s_branch') or base.startswith('s_cbranch') or base == 's_endpgm':
                self.kind = 'branch'
                if 'scc' in base:
                    self.uses.add('scc')
                if 'vcc' in base:
                    self.uses.add('vcc')
                if 'exec' in base:
                    self.uses.add('exec')
            elif any(base.startswith(p) for p in NO_DST_S):
                for r in R:
                    self.uses |= set(r)
                if base.startswith('s_cmp') or base.startswith('s_bitcmp'):
                    self.defs.add('scc')
            else:
                self.defs = set(R[0])
                for r in R[1:]:
                    self.uses |= set(r)
                if 'saveexec' in base:
                    self.defs.add('exec')
                    self.uses.add('exec')
                if base.startswith('s_cselect') or base.startswith('s_addc') or base.startswith('s_subb'):
                    self.uses.add('scc')
                if base in ('s_addk_i32', 's_mulk_i32'):
                    self.uses |= set(R[0])
                if not base.startswith('s_mov') and not base.startswith('s_mul') and not base.startswith('s_getpc') \
                        and not base.startswith('s_cselect') and not base.startswith('s_getreg'):
                    self.defs.add('scc')
        else:
            raise ValueError('unknown instruction: ' + t)


class Code:
    def __init__(self):
        self.items = []

    def __call__(self, text, tag=None):
        for line in text.split('\n'):
            line = line.split(';')[0].strip()
            if not line:
                continue
            if line.endswith(':'):
                self.items.append(Inst(line, kind='label'))
            else:
                self.items.append(Inst(line, tag=tag))
        return self

    def label(self, name):
        self.items.append(Inst(name + ':', kind='label'))

    def comment(self, s):
        self.items.append(Inst('; ' + s, kind='comment'))

    def waittag(self, tag):
        i = Inst('; wait ' + str(tag), kind='waittag')
        i.tag = tag
        self.items.append(i)

    def flush(self):
        self.items.append(Inst('; flush', kind='flush'))

    def need(self, *regs):
        i = Inst('; need', kind='need')
        for r in regs:
            i.uses |= set(regs_of(r))
        self.items.append(i)

    def raw(self, s):
        self.items.append(Inst(s, kind='raw'))

    def extend(self, other):
        self.items.extend(other.items if isinstance(other, Code) else other)

    def __len__(self):
        return len(self.items)


def interleave(main, fill, slots=None, key=lambda i: i.kind == 'mfma', per=1, start=0):
    m = main.items if isinstance(main, Code) else main
    f = fill.items if isinstance(fill, Code) else fill
    pts = [i for i, x in enumerate(m) if key(x)][start:]
    if slots is not None:
        pts = pts[:slots]
    out = []
    n = len(pts)
    done = 0
    ptset = {p: j for j, p in enumerate(pts)}
    for i, x in enumerate(m):
        out.append(x)
        if i in ptset:
            j = ptset[i]
            want = (len(f) * (j + 1) + n - 1) // n
            while done < want:
                out.append(f[done])
                done += 1
    out.extend(f[done:])
    c = Code()
    c.items = out
    return c


def cost(i):
    if i.kind == 'trans':
        return 8
    if i.kind in ('comment', 'label', 'flush', 'raw'):
        return 0
    return 4


def gap_schedule(mfmas, fixed, stream, cap=8, start=0, stop=None):
    n = len(mfmas)
    stop = n if stop is None else stop
    stream = list(stream.items if isinstance(stream, Code) else stream)
    used = {g: sum(cost(x) for x in fixed.get(g, [])) for g in range(-1, n)}
    total = sum(cost(x) for x in stream)
    c = cap
    while True:
        place = {}
        k = 0
        for g in range(start, stop):
            room = c - used[g]
            lst = []
            while k < len(stream) and (cost(stream[k]) <= room):
                room -= cost(stream[k])
                lst.append(stream[k])
                k += 1
            place[g] = lst
        if k == len(stream):
            break
        c += 4
        if c > 64:
            raise ValueError('cannot schedule')
    out = Code()
    out.items.extend(fixed.get(-1, []))
    for g in range(n):
        out.items.append(mfmas[g])
        out.items.extend(place.get(g, []))
        out.items.extend(fixed.get(g, []))
    out.cap = c
    return out


VM_KINDS = ('vload', 'vstore', 'dma')
VALU_KINDS = ('valu', 'trans')


def is_vreg(r):
    return isinstance(r, tuple) and r[0] in ('v', 'a')


def is_sreg(r):
    return (isinstance(r, tuple) and r[0] == 's') or r == 'vcc'


def wait_pass(trace):
    vmq = []
    lgq = []

    def apply_vm(n):
        while len(vmq) > n:
            vmq.pop(0)

    def apply_lg(n):
        if n == 0:
            lgq.clear()
            return
        if any(e[1] for e in lgq):
            return
        while len(lgq) > n:
            lgq.pop(0)

    for ins in trace:
        k = ins.kind
        if k in ('label', 'comment', 'raw'):
            continue
        if k == 'flush':
            continue
        need_vm = None
        need_lg = None
        if k == 'waittag':
            idx = [i for i, e in enumerate(vmq) if e[1] == ins.tag]
            if idx:
                need_vm = len(vmq) - idx[-1] - 1
        elif k == 'wait':
            if ins.vm is not None:
                apply_vm(ins.vm)
            if ins.lgkm is not None:
                apply_lg(ins.lgkm)
            continue
        else:
            touched = ins.uses | ins.defs
            idx = [i for i, e in enumerate(vmq) if e[0] & touched]
            if idx:
                need_vm = len(vmq) - idx[-1] - 1
            idx = [i for i, e in enumerate(lgq) if e[0] & touched]
            if idx:
                if any(e[1] for e in lgq):
                    need_lg = 0
                else:
                    need_lg = len(lgq) - idx[-1] - 1
            if k == 'barrier':
                if lgq:
                    need_lg = 0
        if need_vm is not None:
            need_vm = min(need_vm, 63)
            ins.pre_wait_vm = need_vm if ins.pre_wait_vm is None else min(ins.pre_wait_vm, need_vm)
        if need_lg is not None:
            need_lg = min(need_lg, 15)
            ins.pre_wait_lgkm = need_lg if ins.pre_wait_lgkm is None else min(ins.pre_wait_lgkm, need_lg)
        if ins.pre_wait_vm is not None:
            apply_vm(ins.pre_wait_vm)
        if ins.pre_wait_lgkm is not None:
            apply_lg(ins.pre_wait_lgkm)
        if k in VM_KINDS:
            vmq.append((set(ins.defs), ins.tag))
        elif k in ('dsread', 'dswrite'):
            lgq.append((set(ins.defs), False))
        elif k == 'smem':
            lgq.append((set(ins.defs), True))


def required_gap(p, c):
    g = 0
    pk, ck = p.kind, c.kind
    if pk in VALU_KINDS:
        vdefs = {r for r in p.defs if is_vreg(r)}
        sdefs = {r for r in p.defs if is_sreg(r)}
        if ck == 'mfma' and vdefs & c.uses:
            g = max(g, 2)
        if ck in VALU_KINDS:
            if vdefs & c.uses:
                if c.base.startswith('v_permlane') or c.is_dpp:
                    g = max(g, 2)
                if c.base.startswith('v_readfirstlane') or c.base.startswith('v_readlane'):
                    g = max(g, 1)
            if sdefs & c.uses:
                g = max(g, 4 if ('readlane' in c.base or 'writelane' in c.base) else 2)
        if pk == 'trans' and ck != 'trans' and vdefs & c.uses:
            g = max(g, 1)
        if pk == 'trans' and ck == 'trans' and vdefs & c.uses:
            g = max(g, 1)
        if ck in VM_KINDS and sdefs & c.uses:
            g = max(g, 5)
        if ck in ('salu', 'branch', 'smem') and sdefs & c.uses:
            g = max(g, 2)
    elif pk == 'mfma':
        big = p.passes == 8
        if ck == 'mfma':
            if p.defs & c.srcab:
                g = max(g, 12 if big else 8)
            if p.defs & c.srcc:
                if not (p.dtuple == c.ctuple and p.base == c.base):
                    g = max(g, 10 if big else 6)
            elif p.defs & c.defs:
                g = max(g, 12 if big else 8)
        elif ck in VALU_KINDS or ck in VM_KINDS or ck in ('dsread', 'dswrite'):
            if p.defs & (c.uses | c.defs):
                g = max(g, 12 if big else 8)
            if ck in VALU_KINDS and p.srcc & c.defs:
                g = max(g, 7 if big else 3)
    elif pk == 'salu':
        if 'm0' in p.defs and ck == 'dma':
            g = max(g, 1)
    elif pk == 'vstore':
        if getattr(p, 'wide', False) and p.data & c.defs:
            g = max(g, 2)
    return g


def nop_pass(trace):
    hist = []
    pos = 0
    for ins in trace:
        k = ins.kind
        if k in ('label', 'comment', 'raw', 'waittag', 'need'):
            if ins.pre_wait_vm is not None or ins.pre_wait_lgkm is not None:
                pos += 1
            continue
        if k == 'flush':
            hist = []
            continue
        base = pos + (1 if (ins.pre_wait_vm is not None or ins.pre_wait_lgkm is not None) else 0)
        need = 0
        for p, ppos in hist:
            g = required_gap(p, ins)
            if g:
                have = base - ppos - 1 + 0
                need = max(need, g - have)
        if need > ins.pre_nop:
            ins.pre_nop = need
        pos = base + ins.pre_nop
        hist.append((ins, pos))
        if len(hist) > 24:
            hist.pop(0)
        pos += ins.n if k == 'nop' else 1


def render(items):
    out = []
    for ins in items:
        if ins.kind == 'label':
            out.append(ins.text)
            continue
        w = []
        if ins.pre_wait_vm is not None:
            w.append(f'vmcnt({ins.pre_wait_vm})')
        if ins.pre_wait_lgkm is not None:
            w.append(f'lgkmcnt({ins.pre_wait_lgkm})')
        if w:
            out.append('    s_waitcnt ' + ' '.join(w))
        n = ins.pre_nop
        while n > 0:
            m = min(n, 16)
            out.append(f'    s_nop {m - 1}')
            n -= m
        if ins.kind in ('flush', 'need', 'waittag'):
            continue
        out.append('    ' + ins.text)
    return '\n'.join(out)


def finalize(traces):
    traces = list(traces) + [[i for i in t if not getattr(i, 'optional', False)] for t in traces]
    for _ in range(3):
        for t in traces:
            wait_pass(t)
    for _ in range(3):
        for t in traces:
            nop_pass(t)


def v(a, n=1):
    return f'v{a}' if n == 1 else f'v[{a}:{a + n - 1}]'


def a(i, n=1):
    return f'a{i}' if n == 1 else f'a[{i}:{i + n - 1}]'


def s(i, n=1):
    return f's{i}' if n == 1 else f's[{i}:{i + n - 1}]'


class Alloc:
    def __init__(self, lo, hi):
        self.lo, self.hi, self.cur = lo, hi, lo
        self.high = lo

    def __call__(self, n=1, align=None):
        if align is None:
            align = 1 if n == 1 else (2 if n < 4 else 4)
        c = (self.cur + align - 1) // align * align
        assert c + n <= self.hi, f'out of registers: need {n} at {c}, limit {self.hi}'
        self.cur = c + n
        self.high = max(self.high, self.cur)
        return c

    def mark(self):
        return self.cur

    def release(self, m):
        self.cur = m


def kernel_text(name, body_text, vgpr, agpr, sgpr=102):
    accum = (vgpr + 3) // 4 * 4
    total = accum + agpr if agpr else vgpr
    return f""".text
.globl {name}
.p2align 8
.type {name},@function
{name}:
{body_text}
.section .rodata,"a"
.p2align 6
.amdhsa_kernel {name}
  .amdhsa_next_free_vgpr {total}
  .amdhsa_next_free_sgpr {sgpr}
  .amdhsa_accum_offset {accum}
  .amdhsa_group_segment_fixed_size 0
  .amdhsa_kernarg_size 88
  .amdhsa_user_sgpr_count 2
  .amdhsa_user_sgpr_kernarg_segment_ptr 1
  .amdhsa_system_sgpr_workgroup_id_x 1
  .amdhsa_float_denorm_mode_32 3
.end_amdhsa_kernel
"""
```

```python
import struct
from asmgen import *
from layout import *

S_WS = 8
S_OUT = 12
S_X = 16
S_G = 20
S_W = 24
S_XI = 25
S_I = 26
P_X, P_WQKV, P_WPHI, P_WO, P_BX, P_WG, P_WU, P_WD = 64, 66, 68, 70, 72, 74, 76, 78
P_OUT, P_DBG, P_WS = 80, 82, 84
S_STAMP = 86
V16 = 1
VL = 2
WS = f's[{S_WS}:{S_WS + 3}]'
XS = f's[{S_X}:{S_X + 3}]'
OS = f's[{S_OUT}:{S_OUT + 3}]'
GS = f's[{S_G}:{S_G + 3}]'
OOB = 0x40000000
LOG2E = 1.4426950408889634
SPIN_MAX = 1 << 18


def f32hex(x):
    return '0x%08x' % struct.unpack('<I', struct.pack('<f', x))[0]


class Stamps:
    on = False
    names = []
    pending = []
    total = 0


def stamp(c, name):
    if not Stamps.on:
        return
    i = len(Stamps.pending)
    assert i < 8, 'too many pending stamps'
    Stamps.pending.append(name)
    c(f's_memtime s[{S_STAMP + 2 * i}:{S_STAMP + 2 * i + 1}]')


def stamp_flush(c, base):
    if not Stamps.on:
        return base
    c('s_waitcnt lgkmcnt(0)')
    c('s_lshl_b32 s28, s2, 2')
    c(f's_add_u32 s28, s28, s{S_W}')
    c('s_lshl_b32 s28, s28, 7')
    c(f's_add_u32 s28, s28, {WS_SIZE}')
    c('v_mov_b32 v3, s28')
    for i, n in enumerate(Stamps.pending):
        c(f'v_mov_b32 v4, s{S_STAMP + 2 * i}')
        c(f'global_store_dword v3, v4, s[{P_WS}:{P_WS + 1}] offset:{4 * (base + i)}')
    print('stamp slots', base, Stamps.pending)
    base += len(Stamps.pending)
    Stamps.pending = []
    return base


class Stream:
    def __init__(self, sreg, flags=''):
        self.s = sreg
        self.cur = 0
        self.flags = flags

    def load(self, c, dst, kb, tag=None):
        if kb < self.cur or kb >= self.cur + 4:
            d = (kb - self.cur) * 1024
            c(f's_add_u32 s{self.s}, s{self.s}, {d}' if d >= 0 else f's_sub_u32 s{self.s}, s{self.s}, {-d}')
            self.cur = kb
        off = (kb - self.cur) * 1024
        o = f' offset:{off}' if off else ''
        c(f'buffer_load_dwordx4 {dst}, v{V16}, {WS}, s{self.s} offen{o}{self.flags}', tag=tag)


_uid = [0]


def uid(p):
    _uid[0] += 1
    return f'{p}_{_uid[0]}'


def set_srd(c, base, ptr, nbytes):
    c(f's_mov_b32 s{base}, s{ptr}')
    c(f's_mov_b32 s{base + 1}, s{ptr + 1}')
    c(f's_mov_b32 s{base + 2}, {nbytes}')
    c(f's_mov_b32 s{base + 3}, 0x20000')


def poll_flags(c, voff, soff, vtmp, width=1):
    L = uid('poll')
    c(f's_mov_b32 s29, {SPIN_MAX}')
    c.label(L)
    if width == 1:
        c(f'buffer_load_dword v{vtmp}, v{voff}, {WS}, s{soff} offen sc1')
        c('s_waitcnt vmcnt(0)')
    else:
        c(f'buffer_load_dwordx2 {v(vtmp, 2)}, v{voff}, {WS}, s{soff} offen sc1')
        c('s_waitcnt vmcnt(0)')
        c(f'v_min_u32 v{vtmp}, v{vtmp}, v{vtmp + 1}')
    c(f'v_cmp_eq_u32 vcc, 0, v{vtmp}')
    c(f's_cbranch_vccz {L}_d')
    c('s_sub_u32 s29, s29, 1')
    c(f's_cbranch_scc0 {L}')
    c.label(L + '_d')


def signal_flag(c, soff, voff_tmp, vtmp, tag=None):
    c(f'v_lshlrev_b32 v{voff_tmp}, 24, v{VL}')
    c(f'v_mov_b32 v{vtmp}, 1')
    if tag is None:
        c('s_waitcnt vmcnt(0)')
    else:
        c.waittag(tag)
    c('s_barrier')
    L = uid('sig')
    c(f's_cmp_lg_u32 s{S_W}, 0')
    c(f's_cbranch_scc1 {L}')
    c(f'buffer_store_dword v{vtmp}, v{voff_tmp}, {WS}, s{soff} offen sc1', tag='flagstore')
    c.items[-1].optional = True
    c.label(L)
```

```python
KB = 1024
WS_WO = 0x0
WS_WGU = 0x100000
WS_WD = 0x500000
WS_PHQ = 0x700000
WS_H = 0xC00000
WS_HH = 0xF00000
WS_KV = 0x1500000
WS_ST1 = 0x1520000
WS_CS1 = 0x1528000
WS_ST2 = 0x1530000
WS_CS2 = 0x1570000
WS_FLAG = 0x1580000
WS_SIZE = 0x1590000
CS2_PARTS = 4

KV_HEAD = 3840
KV_POS = {0: 0, 1: 1, 2: 2, 3: 3, 10: 4, 11: 5, 12: 6, 13: 7, 4: 8, 5: 9, 6: 10, 7: 11, 14: 12, 15: 13, 16: 14,
          17: 15, 8: 16, 9: 17, 20: 18, 18: 20, 19: 21}


def kv_off(f, row):
    ks, rem = divmod(f, 16)
    half, rem = divmod(rem, 8)
    q, e = divmod(rem, 4)
    pos = KV_POS[row]
    if ks < 2:
        return ks * 1536 + (q * 2 + half) * 384 + pos * 16 + e * 4
    return 3072 + q * 384 + pos * 16 + e * 4


FL_KV = 0x000
FL_PQ = 0x200
FL_RL = 0x600
FL_OB = 0x800
FL_C = 0xC00
FL_BYTES = 0x1000
```

```python
from common import *

DEBUG = {}
SLOT = 16384 + 20480 + 32
LDS_WP = 4 * SLOT
LDS_ZR = LDS_WP + 7168
LDS_A_END = LDS_ZR + 1024
LDS_PHI = 2 * SLOT
PHI_RS = 352
LDS_V = LDS_PHI + 128 * PHI_RS
V_CS = 272
A_WPHI = 200


def sprinkle(body, extra, every):
    out = Code()
    k = 0
    n = 0
    for ins in body.items:
        out.items.append(ins)
        if ins.kind in ('label', 'comment', 'need', 'waittag'):
            continue
        n += 1
        if n % every == 0 and k < len(extra):
            out.items.extend(extra[k])
            k += 1
    for g in extra[k:]:
        out.items.extend(g)
    return out


def groups_of(code):
    g, cur = [], []
    for i in code.items:
        cur.append(i)
        if i.kind in VM_KINDS:
            g.append(cur)
            cur = []
    if cur:
        g.append(cur)
    return g


def a_address_setup(c, R):
    vx, vw, t = R['vx'], R['vw'], R['t']
    c(f'v_mov_b32 v{R["zero"]}, 0')
    c(f'v_lshrrev_b32 v{t}, 3, v{VL}')
    c(f'v_mul_u32_u24 v{t}, 1280, v{t}')
    c(f'v_lshrrev_b32 v{t + 1}, 4, v{VL}')
    c(f'v_and_b32 v{t + 2}, 7, v{VL}')
    c(f'v_xor_b32 v{t + 1}, v{t + 1}, v{t + 2}')
    c(f'v_lshl_add_u32 v{vx}, v{t + 1}, 4, v{t}')
    c(f'v_xor_b32 v{vx + 1}, 64, v{vx}')
    c(f'v_add_u32 v{vx + 2}, {2 * (10240 - 1024)}, v{vx}')
    c(f'v_add_u32 v{vx + 3}, {3 * (10240 - 1024)}, v{vx + 1}')
    c(f'v_add_u32 v{vx + 1}, {10240 - 1024}, v{vx + 1}')
    c(f's_and_b32 s30, s{S_W}, 1')
    c('s_mul_i32 s30, s30, 320')
    c(f's_lshr_b32 s31, s{S_W}, 1')
    c(f's_mul_i32 s31, s31, {8 * 3840}')
    c(f'v_add_u32 v{t}, s30, v{VL}')
    for j in range(5):
        if j:
            c(f'v_add_u32 v{t}, 64, v{t}')
        c(f'v_mul_u32_u24 v{t + 1}, 3277, v{t}')
        c(f'v_lshrrev_b32 v{t + 1}, 16, v{t + 1}')
        c(f'v_mul_u32_u24 v{t + 2}, 20, v{t + 1}')
        c(f'v_sub_u32 v{t + 2}, v{t}, v{t + 2}')
        c(f'v_and_b32 v{t + 3}, 0x38, v{t + 1}')
        c(f'v_add_u32 v{t + 1}, v{t + 1}, v{t + 3}')
        c(f'v_mul_u32_u24 v{t + 1}, 3840, v{t + 1}')
        c(f'v_lshl_add_u32 v{t + 1}, v{t + 2}, 4, v{t + 1}')
        c(f'v_cmp_lt_u32 vcc, 9, v{t + 2}')
        c(f'v_cndmask_b32 v{t + 2}, 0, v{R["vextra"]}, vcc')
        c(f'v_add3_u32 v{vw + j}, v{t + 1}, v{t + 2}, s31')
        if 0 < j < 4:
            c(f'v_subrev_u32 v{vw + j}, {1024 * j}, v{vw + j}')


def a_regs():
    R = {}
    R['vextra'] = 6
    R['t'] = 8
    R['blk'] = 12
    R['vx'] = 12
    R['rx'] = 16
    R['rw'] = 20
    R['vw'] = 24
    R['poll'] = 29
    R['zero'] = 31
    R['acc'] = 32
    R['wr'] = 112
    R['xr'] = 152
    R['par'] = 168
    R['P0'] = 220
    return R


def a_main(role, R, wo_prefetch):
    c = Code()
    kv = role == 'kv'
    vx, vw, t, rx, rw, acc, wr, xr, par = (R[k] for k in ('vx', 'vw', 't', 'rx', 'rw', 'acc', 'wr', 'xr', 'par'))
    sTT, sHG = 40, 41
    sXo, sWo, sLx, sLw = 42, 43, 44, 45
    if kv:
        c(f's_lshr_b32 s30, s{S_I}, 2')
        c(f's_and_b32 s31, s{S_I}, 3')
        c(f's_and_b32 s32, s{S_XI}, 1')
        c(f's_lshl_b32 s32, s32, 2')
    else:
        c(f's_bfe_u32 s30, s{S_I}, 0x20001')
        c(f's_and_b32 s31, s{S_I}, 1')
        c(f's_and_b32 s32, s{S_XI}, 1')
        c(f's_lshl_b32 s32, s32, 1')
    c(f's_add_u32 s{sHG}, s31, s32')
    c(f's_lshr_b32 s31, s{S_XI}, 1')
    c('s_lshl_b32 s31, s31, 2')
    c(f's_add_u32 s{sTT}, s30, s31')
    c(f's_lshl_b32 s30, s{sTT}, 2')
    c(f's_add_u32 s30, s30, s{S_W}')
    c(f's_mul_i32 s{sXo}, s30, {32 * 1280}')
    if kv:
        c(f's_mul_i32 s{sWo}, s{sHG}, 160')
        c(f's_add_u32 s{sWo}, s{sWo}, 1280')
    else:
        c(f's_mul_i32 s{sWo}, s{sHG}, 320')
    c(f's_lshl_b32 s{sLx}, s{S_W}, 12')
    c(f's_lshr_b32 s31, s{S_W}, 1')
    c('s_mul_i32 s31, s31, 10272')
    c(f's_and_b32 s32, s{S_W}, 1')
    c('s_mul_i32 s32, s32, 5120')
    c('s_add_u32 s31, s31, s32')
    c(f's_add_u32 s{sLw}, s31, 16384')

    def dma(cc, ch):
        slot = ch % 4
        tg = f'ch{ch}'
        if slot:
            cc(f's_add_u32 m0, s{sLx}, {slot * SLOT}')
        else:
            cc(f's_mov_b32 m0, s{sLx}')
        for i in range(4):
            o = f' offset:{1024 * i}' if i else ''
            cc(f'buffer_load_dwordx4 v{vx + i}, {XS}, s{sXo} offen{o} lds', tag=tg)
        if slot:
            cc(f's_add_u32 m0, s{sLw}, {slot * SLOT}')
        else:
            cc(f's_mov_b32 m0, s{sLw}')
        for j in range(4):
            o = f' offset:{1024 * j}' if j else ''
            cc(f'buffer_load_dwordx4 v{vw + j}, {GS}, s{sWo} offen{o} lds', tag=tg)
        cc(f's_add_u32 m0, s{sLw}, {slot * SLOT + 4096}')
        cc(f's_add_u32 s{sXo}, s{sXo}, 128')
        cc(f'buffer_load_dwordx4 v{vw + 4}, {GS}, s{sWo} offen lds', tag=tg)
        cc(f's_add_u32 s{sWo}, s{sWo}, {64 * 3840}')

    for ch in range(4):
        dma(c, ch)
    stamp(c, 'issued')
    set_srd(c, S_OUT, P_WPHI, 25600)
    c(f's_mul_i32 s30, s{sHG}, {3200 if kv else 6400}')
    c(f's_lshl_b32 s31, s{S_W}, 11')
    c('s_add_u32 s30, s30, s31')
    c(f's_add_u32 m0, s31, {LDS_WP}')
    c(f'buffer_load_dwordx4 v{V16}, {OS}, s30 offen lds', tag='wphi')
    L = uid('wp')
    c(f's_cmp_eq_u32 s{S_W}, 3')
    c(f's_cbranch_scc1 {L}')
    c(f'buffer_load_dwordx4 v{V16}, {OS}, s30 offen offset:1024 lds', tag='wphi')
    c.items[-1].optional = True
    c.label(L)
    for i in range(4):
        c(f'v_mov_b32 v{acc + i}, 0')
    c(f'v_add_u32 v{t}, {LDS_ZR}, v{V16}')
    c(f'ds_write_b128 v{t}, {v(acc, 4)}')
    c(f'v_and_b32 v{t}, 15, v{VL}')
    c(f'v_lshrrev_b32 v{t + 1}, 4, v{VL}')
    c(f'v_lshrrev_b32 v{t + 2}, 1, v{t}')
    c(f'v_xor_b32 v{t + 2}, v{t + 2}, v{t + 1}')
    c(f'v_lshlrev_b32 v{t + 2}, 4, v{t + 2}')
    c(f'v_lshl_add_u32 v{t + 2}, v{t}, 7, v{t + 2}')
    c(f'v_add_u32 v{rx}, s{sLx}, v{t + 2}')
    c(f'v_xor_b32 v{rx + 2}, 64, v{rx}')
    c(f'v_add_u32 v{rx + 1}, {2 * SLOT}, v{rx}')
    c(f'v_add_u32 v{rx + 3}, {2 * SLOT}, v{rx + 2}')
    c(f'v_and_b32 v{t + 2}, 1, v{t + 1}')
    c(f'v_mul_u32_u24 v{t + 2}, 10272, v{t + 2}')
    c(f'v_lshrrev_b32 v{t + 3}, 5, v{VL}')
    c(f'v_lshlrev_b32 v{t + 3}, 3, v{t + 3}')
    c(f'v_bfe_u32 v{t}, v{VL}, 2, 2')
    c(f'v_add_u32 v{t + 3}, v{t + 3}, v{t}')
    c(f'v_mul_u32_u24 v{t + 3}, 320, v{t + 3}')
    c(f'v_add_u32 v{t + 2}, v{t + 2}, v{t + 3}')
    c(f'v_and_b32 v{t + 3}, 3, v{VL}')
    c(f'v_mul_u32_u24 v{rw}, 40, v{t + 3}')
    c(f'v_add_u32 v{rw}, v{rw}, v{t + 2}')
    if kv:
        c(f'v_lshl_add_u32 v{rw + 2}, v{t + 3}, 3, v{t + 2}')
        c(f'v_add_u32 v{rw + 2}, 160, v{rw + 2}')
    else:
        c(f'v_add_u32 v{rw + 2}, 160, v{rw}')
    c(f'v_add_u32 v{rw + 1}, {2 * SLOT}, v{rw}')
    c(f'v_add_u32 v{rw + 3}, {2 * SLOT}, v{rw + 2}')

    def xread(n, T):
        ch, ks = n >> 1, n & 1
        slot = ch % 4
        return Inst(f'ds_read_b128 {v(xr + 8 * (n & 1) + 4 * T, 4)}, v{rx + 2 * ks + (slot >> 1)} '
                    f'offset:{(slot & 1) * SLOT + T * 2048}')

    def wread(n, tau, j):
        ch, ks = n >> 1, n & 1
        slot = ch % 4
        half, tl = divmod(tau, 5)
        step = 32 if (kv and half) else 8
        off = (slot & 1) * SLOT + 16384 + ks * 5120 + j * 1280 + tl * step
        return Inst(f'ds_read_b64_tr_b16 {v(wr + 4 * tau + 2 * j, 2)}, v{rw + 2 * half + (slot >> 1)} offset:{off}')

    def mfma(n, tau, T):
        d = v(acc + 40 * (tau // 5) + 20 * T + 4 * (tau % 5), 4)
        w_, x_ = v(wr + 4 * tau, 4), v(xr + 8 * (n & 1) + 4 * T, 4)
        A, B = (x_, w_) if (kv and tau >= 5) else (w_, x_)
        return Inst(f'v_mfma_f32_16x16x32_bf16 {d}, {A}, {B}, {d if n else 0}')

    muT = [par, par + 2]
    cs0 = par + 4
    cs1 = par + 24
    vst = par + 34
    pl = Code()
    pl(f's_lshl_b32 s30, s{sTT}, 2')
    pl(f's_add_u32 s30, s30, s{S_W}')
    pl('s_lshl_b32 s30, s30, 7')
    pl(f's_add_u32 s30, s30, {WS_ST1}')
    pl(f's_add_u32 s31, s30, 8192')
    pl(f'v_and_b32 v{t}, 15, v{VL}')
    pl(f'v_lshlrev_b32 v{t}, 2, v{t}')
    pl(f'v_lshrrev_b32 v{t + 1}, 4, v{VL}')
    pl(f'v_mul_u32_u24 v{t + 2}, 80, v{t + 1}')
    pl(f'v_lshlrev_b32 v{t + 1}, 4, v{t + 1}')
    for T in range(2):
        pl(f'buffer_load_dword v{muT[T]}, v{t}, {WS}, s30 offen offset:{64 * T} sc1')
        pl(f'buffer_load_dword v{muT[T] + 1}, v{t}, {WS}, s31 offen offset:{64 * T} sc1')
    if kv:
        pl(f's_mul_i32 s32, s{sHG}, 320')
        pl(f's_add_u32 s32, s32, {WS_CS1 + 2560}')
    else:
        pl(f's_mul_i32 s32, s{sHG}, 640')
        pl(f's_add_u32 s32, s32, {WS_CS1}')
    for i in range(5):
        pl(f'buffer_load_dwordx4 {v(cs0 + 4 * i, 4)}, v{t + 2}, {WS}, s32 offen offset:{16 * i} sc1')
    if kv:
        for i in range(5):
            pl(f'buffer_load_dword v{cs1 + 2 * i}, v{t}, {WS}, s32 offen offset:{2560 + 64 * i} sc1')
        for T in range(2):
            pl(f'buffer_load_dwordx4 {v(vst + 4 * T, 4)}, v{t + 1}, {WS}, s30 offen offset:{64 * T} sc1')
            pl(f'buffer_load_dwordx4 {v(vst + 8 + 4 * T, 4)}, v{t + 1}, {WS}, s31 offen offset:{64 * T} sc1')
    else:
        for i in range(5):
            pl(f'buffer_load_dwordx4 {v(cs1 + 4 * i, 4)}, v{t + 2}, {WS}, s32 offen offset:{320 + 16 * i} sc1')

    pl_addr = [i for i in pl.items if i.kind != 'vload']
    pl_load = [i for i in pl.items if i.kind == 'vload']
    vwp = R['poll'] + 1

    def wphi_reads(hf):
        e = Code()
        if hf == 0:
            e(f'v_lshrrev_b32 v{t}, 4, v{VL}')
            e(f'v_and_b32 v{t + 1}, 3, v{VL}')
            e(f'v_cmp_eq_u32 vcc, v{t}, v{t + 1}')
            e(f'v_mul_u32_u24 v{t}, 800, v{t}')
            e(f'v_bfe_u32 v{t + 1}, v{VL}, 2, 2')
            e(f'v_mul_u32_u24 v{t + 1}, 40, v{t + 1}')
            e(f'v_add_u32 v{t}, v{t}, v{t + 1}')
            e(f'v_add_u32 v{t}, {LDS_WP}, v{t}')
            e(f'v_mov_b32 v{t + 1}, {LDS_ZR}')
            e(f'v_cndmask_b32 v{vwp}, v{t + 1}, v{t}, vcc')
            if not kv:
                e(f'v_add_u32 v{t}, 3200, v{t}')
                e(f'v_cndmask_b32 v{R["vextra"]}, v{t + 1}, v{t}, vcc')
        base = vwp if hf == 0 else R['vextra']
        for tp in range(5):
            for q in range(5):
                e(f'ds_read_b64_tr_b16 {a(A_WPHI + 10 * tp + 2 * q, 2)}, v{base} offset:{q * 160 + 8 * tp}')
        return e

    c.waittag('ch0')
    c('s_barrier')
    stamp(c, 'ch0')
    for T in range(2):
        c.items.append(xread(0, T))
    for tau in range(10):
        for j in range(2):
            c.items.append(wread(0, tau, j))
    lowq = []
    carry = []
    for n in range(20):
        mf = [mfma(n, tau, T) for tau in range(10) for T in range(2)]
        fixed = {g: [] for g in range(-1, 20)}
        nd = Code()
        nd.need(v(xr + 8 * (n & 1), 8), v(wr, 20))
        fixed[-1] = nd.items
        nd = Code()
        nd.need(v(wr + 20, 20))
        fixed[9] = list(nd.items)
        reads = [(0, r) for r in carry]
        carry = []
        first = 0
        if n + 1 < 20:
            if n & 1:
                b = Code()
                b.waittag(f'ch{(n + 1) >> 1}')
                b('s_barrier')
                fixed[3] += b.items
                first = 4
                ch = ((n + 1) >> 1) + 3
                if ch < 10:
                    d = Code()
                    dma(d, ch)
                    lowq += [(n, 4, i) for i in d.items]
            reads += [(first, xread(n + 1, T)) for T in range(2)]
            for tau in range(10):
                for j in range(2):
                    reads.append((max(first, 2 * tau + 1), wread(n + 1, tau, j)))
            reads.sort(key=lambda z: z[0])
        if n == 13:
            lowq += [(n, 0, i) for i in wphi_reads(0).items]
        if n == 15:
            p = Code()
            p(f'global_load_dword v{R["poll"]}, v{R["zero"]}, s[{P_DBG}:{P_DBG + 1}] sc1')
            lowq = [(n, 0, i) for i in p.items] + lowq + [(n, 0, i) for i in pl_addr]
        if n == 17:
            k = Code()
            L = uid('s0')
            k(f'v_readfirstlane_b32 s33, v{R["poll"]}')
            k('s_cmp_eq_u32 s33, 64')
            k(f's_cbranch_scc1 {L}_d')
            n0 = len(k.items)
            k(f's_mov_b32 s29, {SPIN_MAX}')
            k.label(L)
            k(f'global_load_dword v{R["poll"]}, v{R["zero"]}, s[{P_DBG}:{P_DBG + 1}] sc1')
            k('s_waitcnt vmcnt(0)')
            k(f'v_readfirstlane_b32 s33, v{R["poll"]}')
            k('s_cmp_eq_u32 s33, 64')
            k(f's_cbranch_scc1 {L}_d')
            k('s_sub_u32 s29, s29, 1')
            k(f's_cbranch_scc0 {L}')
            for i in k.items[n0:]:
                i.optional = True
                i.rare = True
            k.label(L + '_d')
            assert not lowq, len(lowq)
            fixed[3] += k.items
            lowq += [(n, 4, i) for i in pl_load]
        for g in range(20):
            room = 8 - sum(cost(x) for x in fixed[g]) - (4 if g == 19 else 0)
            while reads and reads[0][0] <= g and room >= 4:
                fixed[g].append(reads.pop(0)[1])
                room -= 4
            while lowq and room >= 4 and (lowq[0][0] < n or lowq[0][1] <= g):
                fixed[g].append(lowq.pop(0)[2])
                room -= 4
        nxt_barrier = (n + 1) & 1 == 1
        if reads:
            carry = [r for _, r in reads]
            assert len(carry) <= 4, (n, len(carry))
        c.items.extend(fixed[-1])
        for g in range(20):
            c.items.append(mf[g])
            c.items.extend(fixed[g])
        if n in (7,):
            stamp(c, f'n{n}')
    for x in lowq:
        c.items.append(x[2])
    stamp(c, 'main')

    KB = [wr, wr + 12]
    VB = wr + 24
    sc = wr + 44
    P = [R['P0'], R['blk']]

    def corr(e, A, T, cs):
        for i in range(0, 20, 2):
            e(f'v_pk_fma_f32 {v(A + i, 2)}, {v(muT[T], 2)}, {v(cs + i, 2)}, {v(A + i, 2)} op_sel_hi:[0,1,1] '
              f'neg_lo:[1,0,0] neg_hi:[1,0,0]')

    def cvts(A, D, n):
        return [Inst(f'v_cvt_pk_bf16_f32 v{D + i}, v{A + 2 * i}, v{A + 2 * i + 1}') for i in range(n)]

    def pk_mfmas(T):
        out = []
        for s_ in range(3):
            for tp in range(5):
                d = v(P[T] + 4 * tp, 4)
                w0 = A_WPHI + 10 * tp + 4 * s_
                if s_ < 2:
                    out.append(Inst(f'v_mfma_f32_16x16x32_bf16 {d}, {a(w0, 4)}, {v(KB[T] + 4 * s_, 4)}, '
                                    f'{d if s_ else 0}'))
                else:
                    out.append(Inst(f'v_mfma_f32_16x16x16_bf16 {d}, {a(w0, 2)}, {v(KB[T] + 8, 2)}, {d}'))
        return out

    def maxmin(T):
        e = Code()
        p = P[T]
        mx, mn = sc + 2, sc + 4
        e(f'v_max3_f32 v{mx}, v{p}, v{p + 1}, v{p + 2}')
        e(f'v_min3_f32 v{mn}, v{p}, v{p + 1}, v{p + 2}')
        for i in range(3, 19, 2):
            e(f'v_max3_f32 v{mx}, v{mx}, v{p + i}, v{p + i + 1}')
            e(f'v_min3_f32 v{mn}, v{mn}, v{p + i}, v{p + i + 1}')
        e(f'v_max_f32 v{mx}, v{mx}, v{p + 19}')
        e(f'v_min_f32 v{mn}, v{mn}, v{p + 19}')
        return e

    def softmax_rest(T, E_, D):
        e = Code()
        p = P[T]
        cc_, mx, mn, sp, sn = sc, sc + 2, sc + 4, sc + 6, sc + 8
        e(f'v_mul_f32 v{cc_}, {f32hex(LOG2E)}, v{muT[T] + 1}')
        e(f'v_mul_f32 v{mx}, v{mx}, v{cc_}')
        e(f'v_mul_f32 v{mn}, v{mn}, v{cc_}')
        for i in range(0, 20, 2):
            e(f'v_pk_fma_f32 {v(E_ + i, 2)}, {v(p + i, 2)}, {v(cc_, 2)}, {v(mx, 2)} op_sel_hi:[1,0,0] '
              f'neg_lo:[0,0,1] neg_hi:[0,0,1]')
        for i in range(0, 20, 2):
            e(f'v_pk_fma_f32 {v(E_ + 20 + i, 2)}, {v(p + i, 2)}, {v(cc_, 2)}, {v(mn, 2)} op_sel_hi:[1,0,0] '
              f'neg_lo:[1,0,0] neg_hi:[1,0,0]')
        for i in range(40):
            e(f'v_exp_f32 v{E_ + i}, v{E_ + i}')
        e(f'v_pk_add_f32 {v(sp, 2)}, {v(E_, 2)}, {v(E_ + 2, 2)}')
        e(f'v_pk_add_f32 {v(sn, 2)}, {v(E_ + 20, 2)}, {v(E_ + 22, 2)}')
        for i in range(4, 20, 2):
            e(f'v_pk_add_f32 {v(sp, 2)}, {v(sp, 2)}, {v(E_ + i, 2)}')
            e(f'v_pk_add_f32 {v(sn, 2)}, {v(sn, 2)}, {v(E_ + 20 + i, 2)}')
        e(f'v_add_f32 v{sp}, v{sp}, v{sp + 1}')
        e(f'v_add_f32 v{sn}, v{sn}, v{sn + 1}')
        e(f'v_rcp_f32 v{sp}, v{sp}')
        e(f'v_rcp_f32 v{sn}, v{sn}')
        for h_, s_ in ((0, sp), (20, sn)):
            for i in range(0, 20, 2):
                e(f'v_pk_mul_f32 {v(E_ + h_ + i, 2)}, {v(E_ + h_ + i, 2)}, {v(s_, 2)} op_sel_hi:[1,0]')
        e.items += cvts(E_, D, 20)
        return e

    def zip_fill(mf, fill, per=2):
        e = Code()
        fill = list(fill)
        for m in mf:
            e.items.append(m)
            for _ in range(per):
                if fill:
                    e.items.append(fill.pop(0))
        e.items += fill
        return e

    ep = Code()
    if DEBUG.get('dump'):
        def dump(cc, regs):
            cc('s_lshl_b32 s34, s2, 2')
            cc(f's_add_u32 s34, s34, s{S_W}')
            cc('s_lshl_b32 s34, s34, 14')
            cc('s_add_u32 s34, s34, 0x2000000')
            cc(f'v_lshlrev_b32 v3, 2, v{VL}')
            cc('v_add_u32 v3, s34, v3')
            for i, r in enumerate(regs):
                if r.startswith('a'):
                    cc(f'v_accvgpr_read_b32 v4, {r}')
                    r = 'v4'
                cc(f'global_store_dword v3, {r}, s[{P_WS}:{P_WS + 1}] offset:{256 * (i % 16)}')
                if i % 16 == 15:
                    cc('v_add_u32 v3, 4096, v3')
        dump(ep, [f'v{acc + i}' for i in range(20)] + [f'v{par + i}' for i in range(24)] + [f'a{A_WPHI + i}' for i in range(20)])
    if kv:
        aK = [acc, acc + 20]
        aV = [acc + 40, acc + 60]
        corr(ep, aK[0], 0, cs0)
        corr(ep, aK[1], 1, cs0)
        for T in range(2):
            for tl in range(5):
                for h_ in range(0, 4, 2):
                    d = v(aV[T] + 4 * tl + h_, 2)
                    ep(f'v_pk_fma_f32 {d}, {v(vst + 4 * T + h_, 2)}, {v(cs1 + 2 * tl, 2)}, {d} op_sel_hi:[1,0,1] '
                       f'neg_lo:[1,0,0] neg_hi:[1,0,0]')
        for T in range(2):
            for tl in range(5):
                for h_ in range(0, 4, 2):
                    d = v(aV[T] + 4 * tl + h_, 2)
                    ep(f'v_pk_mul_f32 {d}, {d}, {v(vst + 8 + 4 * T + h_, 2)}')
        ep.items += cvts(aK[0], KB[0], 10)
        vc = []
        for tl in range(5):
            for T in range(2):
                vc += cvts(aV[T] + 4 * tl, VB + 4 * tl + 2 * T, 2)
        ep.extend(zip_fill(pk_mfmas(0), cvts(aK[1], KB[1], 10) + vc))
        w_ = Code()
        w_(f'v_and_b32 v{t}, 15, v{VL}')
        w_(f'v_mul_u32_u24 v{t}, {V_CS}, v{t}')
        w_(f'v_and_b32 v{t + 1}, 0x30, v{VL}')
        w_(f's_lshl_b32 s30, s{S_W}, 6')
        w_(f's_add_u32 s30, s30, {LDS_V}')
        w_(f'v_add3_u32 v{t}, v{t}, v{t + 1}, s30')
        for tl in range(5):
            w_(f'ds_write_b128 v{t}, {v(VB + 4 * tl, 4)} offset:{tl * 16 * V_CS}')
        w_(f'v_mov_b32 v{t + 2}, 0x3f803f80')
        w_(f'v_lshlrev_b32 v{t + 3}, 2, v{VL}')
        w_(f'v_add_u32 v{t + 3}, {LDS_V + 80 * V_CS}, v{t + 3}')
        w_(f'ds_write_b32 v{t + 3}, v{t + 2}')
        ep.extend(zip_fill(pk_mfmas(1), w_.items + maxmin(0).items))
        PH = VB
        ep(f'v_and_b32 v{t}, 15, v{VL}')
        ep(f'v_mul_u32_u24 v{t}, {PHI_RS}, v{t}')
        ep(f'v_lshrrev_b32 v{t + 1}, 4, v{VL}')
        ep(f'v_mul_u32_u24 v{t + 1}, 80, v{t + 1}')
        ep(f's_mul_i32 s30, s{S_W}, {32 * PHI_RS}')
        ep(f's_add_u32 s30, s30, {LDS_PHI}')
        ep(f'v_add3_u32 v{t}, v{t}, v{t + 1}, s30')
        PH2 = KB[0]
        for T in range(2):
            if T:
                ep.extend(maxmin(1))
            D = PH if T == 0 else PH2
            ep.extend(softmax_rest(T, acc + 40 * T, D))
            for u in range(5):
                ep(f'ds_write_b128 v{t}, {v(D + 4 * u, 4)} offset:{T * 16 * PHI_RS + 16 * u}')
        ep = sprinkle(ep, groups_of(wo_prefetch), 7)
        c.extend(ep)
        stamp(c, 'softmax')
        vA = [t, t + 1]
        vB = t + 2
        c(f'v_and_b32 v{sc}, 1, v{VL}')
        c(f'v_mul_u32_u24 v{sc}, 10, v{sc}')
        c(f'v_bfe_u32 v{sc + 1}, v{VL}, 1, 1')
        c(f'v_lshl_add_u32 v{sc + 1}, v{sc + 1}, 2, v{sc}')
        c(f'v_bfe_u32 v{sc + 2}, v{VL}, 2, 2')
        c(f'v_add_u32 v{sc + 1}, v{sc + 1}, v{sc + 2}')
        c(f's_mul_i32 s30, s{S_W}, 20')
        c(f'v_add_u32 v{sc + 1}, s30, v{sc + 1}')
        c(f'v_add3_u32 v{sc + 3}, v{sc}, v{sc + 2}, s30')
        c(f'v_add_u32 v{sc + 3}, 8, v{sc + 3}')
        c(f'v_and_b32 v{sc + 4}, 10, v{VL}')
        c(f'v_cmp_eq_u32 vcc, 0, v{sc + 4}')
        c(f'v_mov_b32 v{sc + 4}, 80')
        c(f'v_cndmask_b32 v{sc + 3}, v{sc + 4}, v{sc + 3}, vcc')
        c(f'v_and_b32 v{sc + 4}, 0x30, v{VL}')
        c(f'v_add_u32 v{sc + 4}, {LDS_V}, v{sc + 4}')
        c(f's_movk_i32 s31, {V_CS}')
        c(f'v_mad_u32_u24 v{vA[0]}, v{sc + 1}, s31, v{sc + 4}')
        c(f'v_mad_u32_u24 v{vA[1]}, v{sc + 3}, s31, v{sc + 4}')
        c(f'v_lshrrev_b32 v{sc}, 2, v{VL}')
        c(f'v_mul_u32_u24 v{sc}, {PHI_RS}, v{sc}')
        c(f'v_and_b32 v{sc + 1}, 3, v{VL}')
        c(f'v_lshl_add_u32 v{sc}, v{sc + 1}, 3, v{sc}')
        c(f's_mul_i32 s30, s{S_W}, 80')
        c(f's_add_u32 s30, s30, {LDS_PHI}')
        c(f'v_add_u32 v{vB}, s30, v{sc}')
        at = sc + 6
        c(f'v_bfe_u32 v{sc}, v{VL}, 2, 1')
        c(f'v_bfe_u32 v{sc + 1}, v{VL}, 3, 1')
        c(f'v_and_b32 v{sc + 2}, 0x33, v{VL}')
        c(f'v_and_b32 v{sc + 3}, 3, v{VL}')
        c(f'v_mul_u32_u24 v{sc + 3}, 3, v{sc + 3}')
        c(f'v_add_u32 v{sc + 2}, v{sc + 2}, v{sc + 3}')
        c(f'v_mul_u32_u24 v{sc + 3}, 384, v{sc}')
        c(f'v_add_u32 v{at + 3}, v{sc + 2}, v{sc + 3}')
        c(f'v_add_u32 v{at}, v{at + 3}, v{sc + 3}')
        c(f'v_mul_u32_u24 v{sc + 3}, 384, v{sc + 1}')
        c(f'v_add_u32 v{at}, v{at}, v{sc + 3}')
        c(f'v_lshl_add_u32 v{at + 3}, v{sc + 1}, 30, v{at + 3}')
        c(f'v_lshrrev_b32 v{sc}, 5, v{VL}')
        c(f'v_bfe_u32 v{sc + 1}, v{VL}, 4, 1')
        c(f'v_and_b32 v{sc + 1}, v{sc + 1}, v{sc}')
        for b_ in (0, 3):
            c(f'v_lshl_add_u32 v{at + b_ + 1}, v{sc + 1}, 29, v{at + b_}')
            c(f'v_lshl_add_u32 v{at + b_ + 2}, v{sc}, 29, v{at + b_}')
        c(f's_lshl_b32 s30, s{sHG}, 2')
        c(f's_add_u32 s30, s30, s{S_W}')
        c(f's_mul_i32 s30, s30, {KV_HEAD}')
        c(f's_add_u32 s30, s30, {WS_KV}')
        c('s_barrier')
        fa = acc
        fb = acc + 32
        D = P[0]
        for ks in range(4):
            for dt in range(2):
                c(f'ds_read_b128 {v(fa + 8 * ks + 4 * dt, 4)}, v{vA[dt]} offset:{64 * ks}')
            for ft in range(3):
                for j in range(2):
                    c(f'ds_read_b64_tr_b16 {v(fb + 12 * ks + 4 * ft + 2 * j, 2)}, v{vB} '
                      f'offset:{(32 * ks + 16 * j) * PHI_RS + 32 * ft}')
        for ks in range(4):
            for dt in range(2):
                for ft in range(3):
                    d = v(D + 12 * dt + 4 * ft, 4)
                    c(f'v_mfma_f32_16x16x32_bf16 {d}, {v(fa + 8 * ks + 4 * dt, 4)}, {v(fb + 12 * ks + 4 * ft, 4)}, '
                      f'{d if ks else 0}')
        for dt in range(2):
            for ft in range(3):
                for r in range(4 if dt == 0 else 2):
                    vo = at + (3 if ft == 2 else 0) + (0 if dt == 0 else r + 1)
                    c(f'buffer_atomic_add_f32 v{D + 12 * dt + 4 * ft + r}, v{vo}, {WS}, s30 offen '
                      f'offset:{ft * 1536 + (4 * r + 16 * dt) * 16}', tag='a_out')
        stamp(c, 'atom')
        c(f's_lshl_b32 s30, s{sTT}, 3')
        c(f's_add_u32 s30, s30, s{sHG}')
        c('s_lshl_b32 s30, s30, 2')
        c(f's_add_u32 s30, s30, {WS_FLAG + FL_KV}')
    else:
        PH = [VB, cs0]
        ep(f'v_and_b32 v{t}, 15, v{VL}')
        ep(f'v_lshlrev_b32 v{t}, 4, v{t}')
        ep(f'v_lshrrev_b32 v{t + 1}, 5, v{VL}')
        ep(f'v_mul_u32_u24 v{t + 1}, 5120, v{t + 1}')
        ep(f'v_add_u32 v{t}, v{t}, v{t + 1}')
        ep(f'v_bfe_u32 v{t + 2}, v{VL}, 4, 1')
        ep(f'v_lshl_add_u32 v{t + 1}, v{t + 2}, 9, v{t}')
        ep(f'v_add_u32 v{t + 1}, 4096, v{t + 1}')
        ep(f'v_lshl_add_u32 v{t}, v{t + 2}, 11, v{t}')
        ep(f's_lshl_b32 s30, s{sTT}, 2')
        ep(f's_add_u32 s30, s30, s{S_W}')
        ep(f's_mul_i32 s30, s30, {80 * 1024}')
        ep(f's_mul_i32 s31, s{sHG}, {20 * 1024}')
        ep('s_add_u32 s30, s30, s31')
        ep(f's_add_u32 s30, s30, {WS_PHQ}')
        for hf in range(2):
            aQ = [acc + 40 * hf, acc + 40 * hf + 20]
            cs = cs0 if hf == 0 else cs1
            corr(ep, aQ[0], 0, cs)
            corr(ep, aQ[1], 1, cs)
            ep.items += cvts(aQ[0], KB[0], 10)
            ep.extend(zip_fill(pk_mfmas(0), cvts(aQ[1], KB[1], 10)))
            ep.extend(zip_fill(pk_mfmas(1), maxmin(0).items))
            if hf == 0:
                ep.extend(wphi_reads(1))
            for T in range(2):
                if T:
                    ep.extend(maxmin(1))
                ep.extend(softmax_rest(T, acc + 40 * hf, PH[T]))
                for u in range(4):
                    ep(f'buffer_store_dwordx4 {v(PH[T] + 4 * u, 4)}, v{t}, {WS}, s30 offen '
                       f'offset:{512 * u + 256 * T} sc1', tag='a_out')
                ep(f'buffer_store_dwordx4 {v(PH[T] + 16, 4)}, v{t + 1}, {WS}, s30 offen offset:{256 * T} sc1',
                   tag='a_out')
            if hf == 0:
                ep('s_add_u32 s30, s30, 10240')
        ep = sprinkle(ep, groups_of(wo_prefetch), 12)
        c.extend(ep)
        stamp(c, 'softmax')
        stamp(c, 'atom')
        c(f's_lshl_b32 s30, s{sTT}, 4')
        c(f's_add_u32 s30, s30, s{sHG}')
        c('s_lshl_b32 s30, s30, 2')
        c(f's_add_u32 s30, s30, {WS_FLAG + FL_PQ}')
    signal_flag(c, 30, 3, 4)
    set_srd(c, S_OUT, P_OUT, 2048 * 1280)
    stamp(c, 'sig')
    return c
```

```python
from common import *

L_WO = 0
L_GU = 16384
L_WD = L_GU + 61440
L_CS = L_WD + 32768


def div_offsets(c, dst, vp, t, magic, per_row, row_bytes):
    c(f'v_mul_u32_u24 v{t}, {magic}, v{vp}')
    c(f'v_lshrrev_b32 v{t}, 16, v{t}')
    c(f'v_mul_u32_u24 v{t + 1}, {per_row}, v{t}')
    c(f'v_sub_u32 v{t + 1}, v{vp}, v{t + 1}')
    c(f'v_mul_u32_u24 v{t}, {row_bytes}, v{t}')
    c(f'v_lshl_add_u32 v{dst}, v{t + 1}, 4, v{t}')


def side_main():
    sid = 40
    t = 8
    buf = 16
    ac = 96
    fr = 112
    pre = Code()
    pre(f's_sub_u32 s30, s{S_I}, 24')
    pre('s_lshl_b32 s30, s30, 3')
    pre(f's_add_u32 s{sid}, s30, s{S_XI}')
    set_srd(pre, S_OUT, P_WO, 640 * 1280)
    nb, wq, hf, tg = 41, 42, 43, 44
    pre(f's_and_b32 s{nb}, s{sid}, 3')
    pre(f's_bfe_u32 s{wq}, s{sid}, 0x20002')
    pre(f's_bfe_u32 s{hf}, s{sid}, 0x10004')
    pre(f's_lshr_b32 s{tg}, s{sid}, 5')
    pre(f's_lshl_b32 s30, s{wq}, 1')
    pre(f's_add_u32 s30, s30, s{hf}')
    pre(f's_mul_i32 s30, s30, {80 * 1280}')
    pre(f's_mul_i32 s31, s{nb}, 320')
    pre('s_add_u32 s30, s30, s31')
    pre(f's_mul_i32 s31, s{tg}, 192')
    pre('s_add_u32 s30, s30, s31')
    pre(f's_lshl_b32 s31, s{S_W}, 8')
    pre(f'v_add_u32 v{t + 2}, s31, v{VL}')
    pre(f's_lshl_b32 s31, s{S_W}, 12')
    for j in range(4):
        div_offsets(pre, t + 3, t + 2, t, 5462, 12, 1280)
        pre(f's_add_u32 m0, s31, {L_WO + 1024 * j}')
        pre(f'v_add_u32 v{t + 2}, 64, v{t + 2}')
        pre(f'buffer_load_dwordx4 v{t + 3}, {OS}, s30 offen lds', tag='wo_in')
    pre(f'v_lshrrev_b32 v{t + 4}, 3, v{VL}')
    pre(f'v_and_b32 v{t + 5}, 7, v{VL}')
    LB, LC, LJ = uid('side_b'), uid('side_c'), uid('side_j')
    pre(f's_cmp_ge_u32 s{sid}, 62')
    pre(f's_cbranch_scc1 {LC}')
    pre(f's_cmp_ge_u32 s{sid}, 32')
    pre(f's_cbranch_scc1 {LB}')

    pa = Code()
    pa(f'v_mul_u32_u24 v{t}, 1280, v{t + 4}')
    pa(f'v_lshl_add_u32 v{t}, v{t + 5}, 4, v{t}')
    pa(f's_lshl_b32 s30, s{sid}, 2')
    pa(f's_add_u32 s30, s30, s{S_W}')
    pa(f's_mul_i32 s31, s30, {16 * 1280}')
    pa(f's_add_u32 s32, s31, 10240')
    for rg in range(2):
        for i in range(10):
            pa(f'buffer_load_dwordx4 {v(buf + 40 * rg + 4 * i, 4)}, v{t}, {XS}, s{31 + rg} offen offset:{128 * i}')
    pa(f'v_mov_b32 v{t + 1}, 0x3f803f80')
    for i in range(4):
        pa(f'v_mov_b32 v{ac + i}, 0')
    for rg in range(2):
        for i in range(40):
            r = buf + 40 * rg + i
            pa(f'v_dot2_f32_bf16 v{ac + 2 * rg}, v{r}, v{t + 1}, v{ac + 2 * rg}')
            pa(f'v_dot2_f32_bf16 v{ac + 2 * rg + 1}, v{r}, v{r}, v{ac + 2 * rg + 1}')
    pa('s_nop 2')
    for m in ('quad_perm:[1,0,3,2]', 'quad_perm:[2,3,0,1]', 'row_half_mirror'):
        for i in range(4):
            pa(f'v_add_f32_dpp v{ac + i}, v{ac + i}, v{ac + i} {m} row_mask:0xf bank_mask:0xf')
    for rg in range(2):
        s_, q_ = ac + 2 * rg, ac + 2 * rg + 1
        pa(f'v_mul_f32 v{s_}, {f32hex(1 / 640)}, v{s_}')
        pa(f'v_mul_f32 v{q_}, {f32hex(1 / 640)}, v{q_}')
        pa(f'v_fma_f32 v{q_}, -v{s_}, v{s_}, v{q_}')
        pa(f'v_max_f32 v{q_}, 0, v{q_}')
        pa(f'v_add_f32 v{q_}, {f32hex(1e-5)}, v{q_}')
        pa(f'v_rsq_f32 v{q_}, v{q_}')
    pa(f'v_lshlrev_b32 v{t}, 2, v{t + 4}')
    pa(f'v_lshl_add_u32 v{t}, v{t + 5}, 27, v{t}')
    pa('s_lshl_b32 s30, s30, 6')
    pa(f's_add_u32 s30, s30, {WS_ST1}')
    pa(f's_add_u32 s31, s30, 8192')
    for rg in range(2):
        pa(f'buffer_store_dword v{ac + 2 * rg}, v{t}, {WS}, s30 offen offset:{32 * rg} sc1', tag='s0')
        pa(f'buffer_store_dword v{ac + 2 * rg + 1}, v{t}, {WS}, s31 offen offset:{32 * rg} sc1', tag='s0')
    pa.waittag('wo_in')
    pa('s_barrier')
    pa(f's_branch {LJ}')

    pb = Code()
    pb.label(LB)
    pb(f'v_mul_u32_u24 v{t}, 3840, v{t + 4}')
    pb(f'v_lshl_add_u32 v{t}, v{t + 5}, 4, v{t}')
    pb(f's_sub_u32 s30, s{sid}, 32')
    pb(f's_mul_i32 s31, s{S_W}, {160 * 3840}')
    pb('s_lshl_b32 s32, s30, 7')
    pb('s_add_u32 s31, s31, s32')
    for i in range(20):
        pb(f'buffer_load_dwordx4 {v(buf + 4 * i, 4)}, v{t}, {GS}, s31 offen')
        if i < 19:
            pb(f's_add_u32 s31, s31, {8 * 3840}')
    pb(f'v_mov_b32 v{t + 1}, 0x00003f80')
    pb(f'v_mov_b32 v{t + 2}, 0x3f800000')
    for i in range(8):
        pb(f'v_mov_b32 v{ac + i}, 0')
    for i in range(20):
        for d in range(4):
            for h in range(2):
                pb(f'v_dot2_f32_bf16 v{ac + 2 * d + h}, v{buf + 4 * i + d}, v{t + 1 + h}, v{ac + 2 * d + h}')
    pb('s_nop 2')
    for i in range(8):
        pb(f'v_add_f32_dpp v{ac + i}, v{ac + i}, v{ac + i} row_ror:8 row_mask:0xf bank_mask:0xf')
    for op in ('v_permlane16_swap_b32', 'v_permlane32_swap_b32'):
        for i in range(8):
            pb(f'v_mov_b32 v{ac + 8 + i}, v{ac + i}')
        for i in range(8):
            pb(f'{op} v{ac + i}, v{ac + 8 + i}')
        for i in range(8):
            pb(f'v_add_f32 v{ac + i}, v{ac + i}, v{ac + 8 + i}')
    pb(f's_lshl_b32 s31, s{S_W}, 8')
    pb(f's_add_u32 s31, s31, {L_CS}')
    pb(f'v_lshl_add_u32 v{t}, v{t + 5}, 5, s31')
    pb(f'ds_write_b128 v{t}, {v(ac, 4)}')
    pb(f'ds_write_b128 v{t}, {v(ac + 4, 4)} offset:16')
    pb(f'v_lshlrev_b32 v{t + 1}, 2, v{VL}')
    pb(f'v_add_u32 v{t + 2}, {L_CS}, v{t + 1}')
    pb.waittag('wo_in')
    pb('s_barrier')
    for i in range(4):
        pb(f'ds_read_b32 v{ac + i}, v{t + 2} offset:{256 * i}')
    pb(f'v_add_f32 v{ac}, v{ac}, v{ac + 1}')
    pb(f'v_add_f32 v{ac + 2}, v{ac + 2}, v{ac + 3}')
    pb(f'v_add_f32 v{ac}, v{ac}, v{ac + 2}')
    pb('s_lshl_b32 s30, s30, 8')
    pb(f's_add_u32 s30, s30, {WS_CS1}')
    pb(f'buffer_store_dword v{ac}, v{t + 1}, {WS}, s30 offen sc1', tag='s0')
    pb(f's_branch {LJ}')

    pc = Code()
    pc.label(LC)
    for i in range(4):
        pc(f'v_mov_b32 v{buf + i}, 0')
    pc(f's_lshl_b32 s30, s{S_W}, 10')
    pc(f's_add_u32 s30, s30, {WS_FLAG}')
    pc(f'buffer_store_dwordx4 {v(buf, 4)}, v{V16}, {WS}, s30 offen sc1', tag='s0')
    pc(f's_sub_u32 s30, s{sid}, 62')
    pc('s_lshl_b32 s30, s30, 2')
    pc(f's_add_u32 s30, s30, s{S_W}')
    pc(f's_mul_i32 s30, s30, {15 * 1024}')
    pc(f's_add_u32 s30, s30, {WS_KV}')
    for i in range(15):
        if i and i % 4 == 0:
            pc('s_add_u32 s30, s30, 4096')
        pc(f'buffer_store_dwordx4 {v(buf, 4)}, v{V16}, {WS}, s30 offen offset:{1024 * (i % 4)} sc1', tag='s0')
    pc.waittag('wo_in')
    pc('s_barrier')

    j_ = Code()
    j_.label(LJ)
    j_(f'v_bfe_u32 v{t}, v{VL}, 2, 2')
    j_(f'v_lshrrev_b32 v{t + 1}, 5, v{VL}')
    j_(f'v_mul_u32_u24 v{t + 1}, 10, v{t + 1}')
    j_(f'v_bfe_u32 v{t + 2}, v{VL}, 4, 1')
    j_(f'v_lshlrev_b32 v{t + 2}, 5, v{t + 2}')
    j_(f'v_and_b32 v{t + 3}, 1, v{VL}')
    j_(f'v_lshl_add_u32 v{t + 2}, v{t + 3}, 4, v{t + 2}')
    j_(f'v_bfe_u32 v{t + 3}, v{VL}, 1, 1')
    j_(f'v_lshl_add_u32 v{t + 2}, v{t + 3}, 3, v{t + 2}')
    j_(f's_lshl_b32 s33, s{nb}, 2')
    j_(f's_add_u32 s33, s33, s{wq}')
    j_('s_mul_i32 s33, s33, 50')
    j_(f's_mul_i32 s30, s{hf}, 25')
    j_('s_add_u32 s33, s33, s30')
    j_(f's_mul_i32 s30, s{tg}, 3')
    j_('s_add_u32 s33, s33, s30')
    for i in range(4):
        j_(f's_lshl_b32 s30, s{S_W}, 2')
        j_(f's_add_u32 s30, s30, {i}')
        j_('s_mul_i32 s31, s30, 86')
        j_('s_lshr_b32 s31, s31, 8')
        j_('s_mul_i32 s32, s31, 3')
        j_('s_sub_u32 s32, s30, s32')
        j_('s_mul_i32 s34, s31, 5')
        j_('s_add_u32 s34, s34, s32')
        j_('s_add_u32 s34, s34, s33')
        j_('s_lshl_b32 s34, s34, 10')
        if WS_WO:
            j_(f's_add_u32 s34, s34, {WS_WO}')
        j_('s_cmp_eq_u32 s30, 15')
        j_(f's_cselect_b32 s34, {OOB}, s34')
        j_(f's_add_u32 s35, s32, s{tg}')
        j_('s_cmp_eq_u32 s35, 3')
        j_(f's_cselect_b32 s{45 + i}, {OOB}, s34')
        j_('s_lshl_b32 s31, s31, 3')
        j_('s_lshl_b32 s32, s32, 6')
        if L_WO:
            j_(f's_add_u32 s32, s32, {L_WO}')
        for jj in range(2):
            j_(f'v_add_u32 v{t + 3}, s31, v{t}')
            if jj:
                j_(f'v_add_u32 v{t + 3}, 4, v{t + 3}')
            j_(f'v_mul_u32_u24 v{t + 4}, 26, v{t + 3}')
            j_(f'v_lshrrev_b32 v{t + 4}, 8, v{t + 4}')
            j_(f'v_mul_u32_u24 v{t + 4}, 10, v{t + 4}')
            j_(f'v_add3_u32 v{t + 3}, v{t + 3}, v{t + 4}, v{t + 1}')
            j_(f'v_mul_u32_u24 v{t + 3}, 192, v{t + 3}')
            j_(f'v_add3_u32 v{t + 3}, v{t + 3}, v{t + 2}, s32')
            j_(f'ds_read_b64_tr_b16 {v(fr + 4 * i + 2 * jj, 2)}, v{t + 3}')
    for i in range(4):
        j_(f'buffer_store_dwordx4 {v(fr + 4 * i, 4)}, v{V16}, {WS}, s{45 + i} offen sc1', tag='s0')
    gnb, gkq = 41, 42
    j_(f's_and_b32 s{gnb}, s{sid}, 15')
    j_(f's_lshr_b32 s{gkq}, s{sid}, 4')
    j_(f's_cmp_lt_u32 s{S_W}, 2')
    j_(f's_cselect_b32 s{S_G}, s{P_WG}, s{P_WU}')
    j_(f's_cselect_b32 s{S_G + 1}, s{P_WG + 1}, s{P_WU + 1}')
    j_(f's_mov_b32 s{S_G + 2}, {640 * 3072}')
    j_(f's_mul_i32 s30, s{gkq}, {160 * 3072}')
    j_(f's_mul_i32 s31, s{gnb}, 192')
    j_('s_add_u32 s30, s30, s31')
    j_(f's_and_b32 s31, s{S_W}, 1')
    j_('s_mul_i32 s31, s31, 960')
    j_(f'v_add_u32 v{t + 2}, s31, v{VL}')
    j_(f's_mul_i32 s31, s{S_W}, {15 * 1024}')
    for i in range(15):
        div_offsets(j_, t + 3, t + 2, t, 5462, 12, 3072)
        j_(f's_add_u32 m0, s31, {L_GU + 1024 * i}')
        j_(f'v_add_u32 v{t + 2}, 64, v{t + 2}')
        j_(f'buffer_load_dwordx4 v{t + 3}, {GS}, s30 offen lds', tag='gu_in')
    set_srd(j_, S_OUT, P_WD, 1536 * 1280)
    dkg, dcq = 43, 44
    j_(f's_lshr_b32 s{dkg}, s{sid}, 2')
    j_(f's_and_b32 s{dcq}, s{sid}, 3')
    j_(f's_mul_i32 s30, s{dkg}, {96 * 1280}')
    j_(f's_mul_i32 s31, s{dcq}, 320')
    j_('s_add_u32 s30, s30, s31')
    j_(f's_lshl_b32 s31, s{S_W}, 9')
    j_(f'v_add_u32 v{t + 2}, s31, v{VL}')
    j_(f's_lshl_b32 s31, s{S_W}, 13')
    for i in range(8):
        div_offsets(j_, t + 3, t + 2, t, 3277, 20, 1280)
        j_(f's_add_u32 m0, s31, {L_WD + 1024 * i}')
        j_(f'v_add_u32 v{t + 2}, 64, v{t + 2}')
        j_(f'buffer_load_dwordx4 v{t + 3}, {OS}, s30 offen lds', tag='wd_in')
    j_.waittag('s0')
    j_('s_barrier')
    stamp(j_, 's0')
    L = uid('s0sig')
    j_(f's_cmp_lg_u32 s{S_W}, 0')
    j_(f's_cbranch_scc1 {L}')
    n0 = len(j_.items)
    j_(f'v_mov_b32 v{t}, 0')
    j_(f'v_mov_b32 v{t + 1}, 1')
    j_('s_mov_b64 exec, 1')
    j_(f'global_atomic_add v{t}, v{t + 1}, s[{P_DBG}:{P_DBG + 1}] sc1')
    j_('s_mov_b64 exec, -1')
    for i in j_.items[n0:]:
        i.optional = True
    j_.label(L)
    j_(f'v_lshrrev_b32 v{t}, 4, v{VL}')
    j_(f'v_lshlrev_b32 v{t}, 3, v{t}')
    j_(f'v_bfe_u32 v{t + 1}, v{VL}, 2, 2')
    j_(f'v_add_u32 v{t}, v{t}, v{t + 1}')
    j_(f'v_mul_u32_u24 v{t + 6}, 320, v{t}')
    j_(f'v_mul_u32_u24 v{t}, 192, v{t}')
    j_(f's_mul_i32 s30, s{S_W}, 48')
    j_(f's_add_u32 s30, s30, {L_GU}')
    j_(f'v_add_u32 v{t}, s30, v{t}')
    j_(f'v_and_b32 v{t + 1}, 3, v{VL}')
    j_(f'v_lshl_add_u32 v{t + 6}, v{t + 1}, 3, v{t + 6}')
    j_(f'v_lshl_add_u32 v{t + 2}, v{t + 1}, 3, v{t}')
    j_(f'v_and_b32 v{t + 1}, 1, v{VL}')
    j_(f'v_lshl_add_u32 v{t + 3}, v{t + 1}, 3, v{t}')
    j_(f'v_bfe_u32 v{t + 1}, v{VL}, 1, 1')
    j_(f'v_mul_u32_u24 v{t + 1}, 30720, v{t + 1}')
    j_(f'v_add3_u32 v{t + 3}, v{t + 3}, v{t + 1}, 32')
    j_(f's_lshl_b32 s30, s{gnb}, 2')
    j_(f's_add_u32 s30, s30, s{S_W}')
    j_('s_mul_i32 s31, s30, 60')
    j_(f's_mul_i32 s32, s{gkq}, 15')
    j_('s_add_u32 s31, s31, s32')
    j_('s_lshl_b32 s31, s31, 10')
    j_(f's_add_u32 s31, s31, {WS_WGU}')
    j_(f'v_mov_b32 v{t + 4}, 0x3f803f80')
    for i in range(3):
        j_(f'v_mov_b32 v{ac + i}, 0')
    j_.waittag('gu_in')
    j_('s_barrier')
    for s_ in range(5):
        for tl in range(3):
            for jj in range(2):
                base = t + 3 if tl == 2 else t + 2
                off = (32 * s_ + 4 * jj) * 192 + (30720 if tl == 1 else 0)
                j_(f'ds_read_b64_tr_b16 {v(buf + 4 * (3 * s_ + tl) + 2 * jj, 2)}, v{base} offset:{off}')
    for f in range(15):
        if f and f % 4 == 0:
            j_('s_add_u32 s31, s31, 4096')
        j_(f'buffer_store_dwordx4 {v(buf + 4 * f, 4)}, v{V16}, {WS}, s31 offen offset:{1024 * (f % 4)} sc1')
        for d in range(4):
            j_(f'v_dot2_f32_bf16 v{ac + f % 3}, v{buf + 4 * f + d}, v{t + 4}, v{ac + f % 3}')
    j_('s_nop 2')
    for op in ('v_permlane16_swap_b32', 'v_permlane32_swap_b32'):
        for i in range(3):
            j_(f'v_mov_b32 v{ac + 8 + i}, v{ac + i}')
        for i in range(3):
            j_(f'{op} v{ac + i}, v{ac + 8 + i}')
        for i in range(3):
            j_(f'v_add_f32 v{ac + i}, v{ac + i}, v{ac + 8 + i}')
    j_(f'v_lshrrev_b32 v{t}, 4, v{VL}')
    j_(f'v_lshlrev_b32 v{t}, 28, v{t}')
    j_(f'v_bfe_u32 v{t + 1}, v{VL}, 2, 2')
    j_(f'v_mul_u32_u24 v{t + 1}, 48, v{t + 1}')
    j_(f'v_and_b32 v{t + 2}, 3, v{VL}')
    j_(f'v_lshl_add_u32 v{t + 1}, v{t + 2}, 2, v{t + 1}')
    j_(f'v_add_u32 v{t + 1}, v{t + 1}, v{t}')
    j_(f'v_bfe_u32 v{t + 2}, v{VL}, 2, 1')
    j_(f'v_and_b32 v{t + 3}, 2, v{VL}')
    j_(f'v_add_u32 v{t + 2}, v{t + 2}, v{t + 3}')
    j_(f'v_mul_u32_u24 v{t + 2}, 48, v{t + 2}')
    j_(f'v_and_b32 v{t + 3}, 1, v{VL}')
    j_(f'v_lshl_add_u32 v{t + 2}, v{t + 3}, 2, v{t + 2}')
    j_(f'v_bfe_u32 v{t + 3}, v{VL}, 3, 1')
    j_(f'v_mul_u32_u24 v{t + 3}, 24, v{t + 3}')
    j_(f'v_add3_u32 v{t + 2}, v{t + 2}, v{t + 3}, v{t}')
    j_(f's_lshl_b32 s31, s{gkq}, 6')
    j_('s_add_u32 s30, s30, s31')
    j_('s_mul_i32 s30, s30, 192')
    j_(f's_add_u32 s30, s30, {WS_CS2}')
    j_(f'buffer_store_dword v{ac}, v{t + 1}, {WS}, s30 offen sc1')
    j_(f'buffer_store_dword v{ac + 1}, v{t + 1}, {WS}, s30 offen offset:24 sc1')
    j_(f'buffer_store_dword v{ac + 2}, v{t + 2}, {WS}, s30 offen offset:16 sc1')
    j_.waittag('wd_in')
    j_('s_barrier')
    for i in range(8):
        j_(f's_lshl_b32 s30, s{S_W}, 3')
        j_(f's_add_u32 s30, s30, {i}')
        j_('s_mul_i32 s31, s30, 26')
        j_('s_lshr_b32 s31, s31, 8')
        j_('s_mul_i32 s32, s31, 10')
        j_('s_sub_u32 s32, s30, s32')
        j_('s_mul_i32 s33, s31, 10240')
        j_('s_lshl_b32 s34, s32, 5')
        j_('s_add_u32 s33, s33, s34')
        j_(f's_add_u32 s33, s33, {L_WD}')
        j_(f'v_add_u32 v{t}, s33, v{t + 6}')
        j_(f'ds_read_b64_tr_b16 {v(fr + 4 * i, 2)}, v{t}')
        j_(f'ds_read_b64_tr_b16 {v(fr + 4 * i + 2, 2)}, v{t} offset:1280')
        j_('s_cmp_ge_u32 s32, 5')
        j_('s_cselect_b32 s33, 235, 0')
        j_('s_add_u32 s33, s33, s32')
        j_('s_mul_i32 s34, s31, 5')
        j_('s_add_u32 s33, s33, s34')
        j_(f's_mul_i32 s34, s{dkg}, 15')
        j_('s_add_u32 s33, s33, s34')
        j_(f's_mul_i32 s34, s{dcq}, 480')
        j_('s_add_u32 s33, s33, s34')
        j_('s_lshl_b32 s33, s33, 10')
        j_(f's_add_u32 s33, s33, {WS_WD}')
        j_('s_cmp_ge_u32 s30, 30')
        j_(f's_cselect_b32 s{45 + i}, {OOB}, s33')
    for i in range(8):
        j_(f'buffer_store_dwordx4 {v(fr + 4 * i, 4)}, v{V16}, {WS}, s{45 + i} offen sc1')
    stamp(j_, 'relayout')
    L = uid('s0w')
    j_(f'v_mov_b32 v{t}, 0')
    j_(f's_mov_b32 s29, {SPIN_MAX}')
    j_.label(L)
    j_(f'global_load_dword v{t + 1}, v{t}, s[{P_DBG}:{P_DBG + 1}] sc1')
    j_('s_waitcnt vmcnt(0)')
    j_(f'v_readfirstlane_b32 s33, v{t + 1}')
    j_('s_cmp_eq_u32 s33, 64')
    j_(f's_cbranch_scc1 {L}_d')
    j_('s_sub_u32 s29, s29, 1')
    j_(f's_cbranch_scc0 {L}')
    j_.label(L + '_d')
    j_(f's_lshl_b32 s30, s{sid}, 2')
    j_(f's_add_u32 s30, s30, {WS_FLAG + FL_RL}')
    signal_flag(j_, 30, 3, 4)
    set_srd(j_, S_OUT, P_OUT, 2048 * 1280)
    stamp(j_, 'sig')
    code = Code()
    for p in (pre, pa, pb, pc, j_):
        code.extend(p)
    traces = [pre.items + p.items + j_.items for p in (pa, pb, pc)]
    return code, traces
```

```python
import sys
sys.path.insert(0, 'gen')
from common import *
import pha
import side

NAME = 'sequential_preLN__linear_kernel_hedgehog__glu_gated_geglu__prompt_kernel'


def build(stop=None, stamps=False, out='mega.s', as_list=True):
    Stamps.on = stamps
    Stamps.pending = []
    R = pha.a_regs()
    e = Code()
    stamp(e, 'start')
    e('s_cmp_ge_u32 s2, 256')
    e('s_cbranch_scc1 L_end')
    e('s_load_dwordx16 s[64:79], s[0:1], 0')
    e('s_load_dwordx4 s[80:83], s[0:1], 64')
    e('s_load_dwordx2 s[84:85], s[0:1], 80')
    e('s_getpc_b64 s[28:29]')
    e.label('L_pc')
    e('v_lshrrev_b32 v5, 6, v0')
    e(f'v_and_b32 v{VL}, 63, v0')
    e(f'v_readfirstlane_b32 s{S_W}, v5')
    e(f's_and_b32 s{S_XI}, s2, 7')
    e(f's_lshr_b32 s{S_I}, s2, 3')
    e(f's_and_b32 s30, s{S_I}, 7')
    e('s_lshl_b32 s30, s30, 13')
    e('v_lshlrev_b32 v5, 11, v5')
    e(f'v_and_b32 v3, 15, v0')
    e('v_lshl_add_u32 v3, v3, 7, v5')
    e('v_add_u32 v3, s30, v3')
    e('v_min_u32 v3, L_end-L_pc, v3')
    e('global_load_dword v4, v3, s[28:29]')
    e(f'v_lshlrev_b32 v{V16}, 4, v{VL}')
    e(f's_cmp_lt_u32 s{S_I}, 16')
    e('s_cselect_b32 s30, 1120, 0')
    e(f'v_mov_b32 v{R["vextra"]}, s30')
    pha.a_address_setup(e, R)
    set_srd(e, S_X, P_X, 2048 * 1280)
    set_srd(e, S_G, P_WQKV, 640 * 3840)
    set_srd(e, S_WS, P_WS, WS_SIZE)
    e(f's_cmp_ge_u32 s{S_I}, 16')
    e('s_cbranch_scc1 L_notkv')
    st0 = list(Stamps.pending)

    def wo_pf():
        return Code()

    kv = pha.a_main('kv', R, wo_pf())
    nb = stamp_flush(kv, 0)
    kv('s_branch L_join')
    Stamps.pending = list(st0)
    q = Code()
    q.label('L_notkv')
    q(f's_cmp_ge_u32 s{S_I}, 24')
    q('s_cbranch_scc1 L_side')
    qh = list(q.items)
    q.extend(pha.a_main('q', R, wo_pf()))
    stamp_flush(q, 0)
    q('s_branch L_join')
    Stamps.pending = list(st0)
    sd = Code()
    sd.label('L_side')
    scode, straces = side.side_main()
    sd.extend(scode)
    tail = Code()
    stamp_flush(tail, 0)
    sd.extend(tail)
    rest = Code()
    rest.label('L_join')
    rest.label('L_end')
    rest('s_endpgm')
    traces = [e.items + kv.items + rest.items, e.items + q.items + rest.items]
    traces += [e.items + qh + t + tail.items + rest.items for t in straces]
    finalize(traces)
    allc = e.items + kv.items + q.items + sd.items + rest.items
    body = render(allc)
    hdr = open('sequential_preLN__linear_kernel_hedgehog__glu_gated_geglu__prompt.s.ref').read()
    hdr = hdr[:hdr.index('; Override launch')]
    lds = pha.LDS_A_END
    if as_list:
        hdr += f'; @launch kernel={NAME} grid=(256,1,1) block=(256,1,1) lds={lds}\n'
    else:
        hdr += f'; @launch grid=(256,1,1) block=(256,1,1) lds={lds}\n'
    txt = hdr + '.amdgcn_target "amdgcn-amd-amdhsa--gfx950"\n' + kernel_text(NAME, body, 256, 256)
    open(out, 'w').write(txt)
    print('instructions', sum(1 for l in body.split('\n') if l.startswith('    ') and not l.strip().startswith(';')))


if __name__ == '__main__':
    pha.DEBUG['dump'] = 'dump' in sys.argv
    build(stamps='stamps' in sys.argv)
```
